```python
import torch

def _softmax(x, axis=-1):
    return torch.softmax(x, dim=axis)
def _gelu(x):
    return torch.nn.functional.gelu(x, approximate="tanh")
def _silu(x):
    return torch.nn.functional.silu(x)
def _sigmoid(x):
    return torch.sigmoid(x)
def _layernorm(x, axis=-1, eps=1e-5):
    m = x.mean(dim=axis, keepdim=True)
    v = x.var(dim=axis, keepdim=True, unbiased=False)
    return (x - m) / torch.sqrt(v + eps)
def _scatter_add(tgt, idx, src, axis=0):
    return tgt.clone().index_add_(axis, idx, src)
def _segment_sum(src, seg, n):
    out = torch.zeros((n,) + src.shape[1:], dtype=src.dtype)
    return out.index_add_(0, seg, src)
def _pad(x, pw):
    flat = tuple(v for pair in reversed(pw) for v in pair)
    return torch.nn.functional.pad(x, flat)

kernel_name = 'interleave_layers__linear_kernel_hedgehog__dense_activation_squared_relu__prompt'

def setup_inputs():

    _w = (lambda a: (lambda t: t.to(torch.bfloat16) if t.is_floating_point() else t)(torch.as_tensor(a)))
    def _A_setup():
        B, S, D, H = 1, 2048, 576, 32
        Dh = D // H
        return {
            "x": _w((lambda *s: torch.randn(*s, dtype=torch.bfloat16) * 0.05)(B, S, D)),
            "wqkv": _w((lambda *s: torch.randn(*s, dtype=torch.bfloat16) * 0.2)(D, 3 * D)),
            "w_phi": _w((lambda *s: torch.randn(*s, dtype=torch.bfloat16) * 0.2)(H, Dh, Dh) * (Dh ** -0.5)),
            "wo": _w((lambda *s: torch.randn(*s, dtype=torch.bfloat16) * 0.1)(D, D)),
        }
    _A_in = _A_setup()

    def _B_setup():
        B, S, D, F = 1, 2048, 576, 4608
        return {
            "x": _w((lambda *s: torch.randn(*s, dtype=torch.bfloat16) * 0.05)(B, S, D)),
            "w1": _w((lambda *s: torch.randn(*s, dtype=torch.bfloat16) * 0.05)(D, F)),
            "b1": _w((lambda *s: torch.randn(*s, dtype=torch.bfloat16) * 0.2)(F)),
            "w2": _w((lambda *s: torch.randn(*s, dtype=torch.bfloat16) * 0.05)(F, D)),
            "b2": _w((lambda *s: torch.randn(*s, dtype=torch.bfloat16) * 1.6)(D)),
        }
    _B_in = _B_setup()

    return {
        "A_x": _A_in["x"],
        "A_wqkv": _A_in["wqkv"],
        "A_w_phi": _A_in["w_phi"],
        "A_wo": _A_in["wo"],
        "B_x": _B_in["x"],
        "B_w1": _B_in["w1"],
        "B_b1": _B_in["b1"],
        "B_w2": _B_in["w2"],
        "B_b2": _B_in["b2"],
    }

def reference(A_x, A_wqkv, A_w_phi, A_wo, B_x, B_w1, B_b1, B_w2, B_b2):
    def _A_ref(x, wqkv, w_phi, wo):
        B, S, D = x.shape
        H = 32; Dh = D // H
        qkv = (lambda x, *d: x.permute(*d))((x @ wqkv).reshape(B, S, 3, H, Dh), 2, 0, 3, 1, 4)
        q, k, v = qkv[0], qkv[1], qkv[2]
        pq = torch.einsum("bhsd,hdf->bhsf", q, w_phi)
        pk = torch.einsum("bhsd,hdf->bhsf", k, w_phi)
        phi_q = torch.concatenate([_softmax(pq, axis=-1), _softmax(-pq, axis=-1)], axis=-1)
        phi_k = torch.concatenate([_softmax(pk, axis=-1), _softmax(-pk, axis=-1)], axis=-1)
        kv = torch.einsum("bhsf,bhsd->bhfd", phi_k, v)
        z  = torch.einsum("bhsf->bhf", phi_k)
        num = torch.einsum("bhqf,bhfd->bhqd", phi_q, kv)
        den = torch.einsum("bhqf,bhf->bhq", phi_q, z)[..., None] + 1e-6
        o = num / den
        return (lambda x, *d: x.permute(*d))(o, 0, 2, 1, 3).reshape(B, S, D) @ wo

    def _B_ref(x, w1, b1, w2, b2):
        h = torch.einsum("bsd,df->bsf", x, w1) + b1
        zero = torch.zeros_like(h)
        r = torch.where(h > zero, h, zero)
        h = r * r
        out = torch.einsum("bsf,fd->bsd", h, w2) + b2
        return out

    x = A_x
    x = x + _A_ref(_layernorm(x, axis=-1), A_wqkv, A_w_phi, A_wo)
    x = x + _B_ref(_layernorm(x, axis=-1), B_w1, B_b1, B_w2, B_b2)
    x = x + _A_ref(_layernorm(x, axis=-1), A_wqkv, A_w_phi, A_wo)
    x = x + _B_ref(_layernorm(x, axis=-1), B_w1, B_b1, B_w2, B_b2)
    return x
```

```python
import re

TRANS = ('v_exp_f32', 'v_log_f32', 'v_rcp_f32', 'v_rsq_f32', 'v_sqrt_f32', 'v_sin_f32', 'v_cos_f32',
         'v_rcp_iflag_f32')
RMW_DST = ('v_fmac_f32', 'v_pk_fmac_f32', 'v_fmac_f32_e32', 'v_dot2c_f32_bf16')

_reg_re = re.compile(r'^(-|abs\()?\s*([vsa])(\d+)\)?$')
_rng_re = re.compile(r'^(-|abs\()?\s*([vsa])\[(\d+):(\d+)\]\)?$')


def parse_reg(tok):
    tok = tok.strip()
    if tok.startswith('-'):
        tok = tok[1:]
    if tok.startswith('abs(') and tok.endswith(')'):
        tok = tok[4:-1]
    if tok.startswith('|') and tok.endswith('|'):
        tok = tok[1:-1]
    m = re.match(r'^([vsa])(\d+)$', tok)
    if m:
        return {(m.group(1), int(m.group(2)))}
    m = re.match(r'^([vsa])\[(\d+):(\d+)\]$', tok)
    if m:
        return {(m.group(1), i) for i in range(int(m.group(2)), int(m.group(3)) + 1)}
    if tok in ('vcc', 'vcc_lo', 'vcc_hi'):
        return {('s', 'vcc')}
    if tok in ('exec', 'exec_lo', 'exec_hi'):
        return {('s', 'exec')}
    if tok == 'm0':
        return {('s', 'm0')}
    return set()


def split_ops(s):
    out, depth, cur = [], 0, ''
    for ch in s:
        if ch in '[(':
            depth += 1
        if ch in '])':
            depth -= 1
        if ch == ',' and depth == 0:
            out.append(cur.strip())
            cur = ''
        else:
            cur += ch
    if cur.strip():
        out.append(cur.strip())
    return out


class Ins:
    __slots__ = ('mn', 'cat', 'reads', 'writes', 'passes', 'states', 'srcA', 'srcB', 'srcC', 'dst', 'dpp',
                 'lds_dma', 'wide_store', 'trans', 'text')


def classify(text):
    t = text.split(';')[0].strip()
    parts = t.split(None, 1)
    mn = parts[0]
    rest = parts[1] if len(parts) > 1 else ''
    ins = Ins()
    ins.text = text
    ins.mn = mn
    ins.reads = set()
    ins.writes = set()
    ins.passes = 0
    ins.states = 1
    ins.srcA = ins.srcB = ins.srcC = ins.dst = set()
    ins.dpp = False
    ins.lds_dma = False
    ins.wide_store = False
    ins.trans = False
    ops = split_ops(rest)
    mods = ''
    if ops:
        last = ops[-1].split()
        if len(last) > 1:
            ops[-1] = last[0]
            mods = ' '.join(last[1:])
    regs = [parse_reg(o) for o in ops]
    if mn == 's_nop':
        ins.cat = 'nop'
        ins.states = int(rest.strip(), 0) + 1
        return ins
    if mn in ('s_waitcnt', 's_barrier', 's_endpgm', 's_setprio', 's_sleep') or mn.startswith('s_cbranch') or mn == 's_branch':
        ins.cat = 'misc'
        return ins
    if mn.startswith('v_mfma'):
        ins.cat = 'mfma'
        ins.dst = regs[0]
        ins.srcA, ins.srcB, ins.srcC = regs[1], regs[2], regs[3]
        ins.writes = set(regs[0])
        ins.reads = regs[1] | regs[2] | regs[3]
        ins.passes = 8 if '32x32' in mn else 4
        return ins
    if mn.startswith('v_'):
        ins.cat = 'valu'
        ins.trans = mn.replace('_e32', '').replace('_e64', '') in TRANS
        ins.dpp = 'dpp' in mn or 'row_' in mods or 'quad_perm' in mods
        if mn.startswith('v_permlane') and 'swap' in mn:
            ins.reads = regs[0] | regs[1]
            ins.writes = regs[0] | regs[1]
            ins.cat = 'valu'
            return ins
        if mn.startswith('v_cmpx'):
            raise ValueError('v_cmpx not supported by hazard tracker')
        ins.writes = set(regs[0])
        srcs = regs[1:]
        if mn.startswith(('v_add_co', 'v_sub_co', 'v_subrev_co', 'v_addc_co', 'v_subb_co', 'v_subbrev_co',
                          'v_div_scale', 'v_mad_u64_u32')):
            ins.writes |= regs[1]
            srcs = regs[2:]
        for r in srcs:
            ins.reads |= r
        base = mn.replace('_e32', '').replace('_e64', '')
        if base in RMW_DST:
            ins.reads |= regs[0]
        if base == 'v_cndmask_b32' and len(ops) == 3:
            ins.reads |= {('s', 'vcc')}
        if base.startswith('v_cmp') and False:
            pass
        if base in ('v_div_fmas_f32',):
            ins.reads |= {('s', 'vcc')}
        if base == 'v_writelane_b32':
            ins.reads |= regs[0]
        return ins
    if mn.startswith(('buffer_', 'global_', 'flat_')):
        ins.cat = 'vmem'
        is_lds = bool(re.search(r'\blds\b', mods)) or '_lds_' in mn
        if 'load' in mn and not is_lds:
            ins.writes = set(regs[0])
            for r in regs[1:]:
                ins.reads |= r
            if 'd16' in mn:
                ins.reads |= regs[0]
        else:
            for r in regs:
                ins.reads |= r
            if is_lds:
                ins.lds_dma = True
                ins.reads |= {('s', 'm0')}
            if 'store' in mn and ('x3' in mn or 'x4' in mn):
                ins.wide_store = True
                ins.dst = regs[0] if mn.startswith('buffer_') else regs[1]
            if 'atomic' in mn and re.search(r'\bsc0\b', mods):
                ins.writes = set(regs[0])
        return ins
    if mn.startswith('ds_'):
        ins.cat = 'ds'
        if mn.startswith(('ds_read', 'ds_bpermute', 'ds_permute', 'ds_swizzle')):
            ins.writes = set(regs[0])
            for r in regs[1:]:
                ins.reads |= r
            if 'd16' in mn:
                ins.reads |= regs[0]
        else:
            for r in regs:
                ins.reads |= r
        return ins
    if mn.startswith('s_load') or mn.startswith('s_buffer_load') or mn.startswith('s_mem'):
        ins.cat = 'smem'
        ins.writes = set(regs[0])
        for r in regs[1:]:
            ins.reads |= r
        return ins
    if mn.startswith('s_'):
        ins.cat = 'salu'
        if mn.startswith('s_cmp') or mn.startswith('s_bitcmp'):
            for r in regs:
                ins.reads |= r
        else:
            ins.writes = set(regs[0])
            for r in regs[1:]:
                ins.reads |= r
            if 'saveexec' in mn:
                ins.writes |= {('s', 'exec')}
                ins.reads |= {('s', 'exec')}
            if mn in ('s_addk_i32', 's_mulk_i32'):
                ins.reads |= regs[0]
        return ins
    raise ValueError('unknown instruction: ' + text)


def is_v(r):
    return r[0] in ('v', 'a')


def is_s(r):
    return r[0] == 's'


MFMA_D_VALU = {4: 8, 8: 12}
MFMA_D_AB = {4: 8, 8: 12}
MFMA_D_COVL = {4: 6, 8: 10}
MFMA_C_WAR = {4: 3, 8: 7}


def required(p, c):
    need = 0
    if p.cat == 'valu':
        vw = {r for r in p.writes if is_v(r)}
        sw = {r for r in p.writes if is_s(r)}
        if c.cat == 'mfma' and (vw & c.reads):
            need = max(need, 2)
        if c.cat == 'valu':
            if c.dpp and (vw & c.reads):
                need = max(need, 2)
            if c.mn.startswith('v_permlane') and (vw & c.reads):
                need = max(need, 2)
            if c.mn.startswith(('v_readfirstlane', 'v_readlane')) and (vw & c.reads):
                need = max(need, 1)
            if p.trans and not c.trans and (vw & (c.reads | c.writes)):
                need = max(need, 1)
            if sw & c.reads:
                if c.mn.startswith(('v_readlane', 'v_writelane')):
                    need = max(need, 4)
                elif c.mn.startswith('v_div_fmas'):
                    need = max(need, 4)
                else:
                    need = max(need, 2)
        if c.cat == 'vmem' and (sw & c.reads):
            need = max(need, 5)
        if c.cat in ('salu', 'smem', 'misc') and (sw & c.reads):
            need = max(need, 1)
        if p.trans and c.cat in ('vmem', 'ds') and (vw & c.reads):
            need = max(need, 1)
    if p.cat == 'mfma':
        d = p.dst
        if c.cat == 'valu' and (d & (c.reads | c.writes)):
            need = max(need, MFMA_D_VALU[p.passes])
        if c.cat in ('vmem', 'ds') and (d & (c.reads | c.writes)):
            need = max(need, MFMA_D_VALU[p.passes])
        if c.cat == 'mfma':
            if d & (c.srcA | c.srcB):
                need = max(need, MFMA_D_AB[p.passes])
            if d & c.srcC:
                if d == c.srcC and p.passes == c.passes:
                    pass
                else:
                    need = max(need, MFMA_D_COVL[p.passes])
            elif d & c.dst:
                need = max(need, MFMA_D_COVL[p.passes])
        if c.cat == 'valu' and (p.srcC & c.writes):
            need = max(need, MFMA_C_WAR[p.passes])
        if c.cat in ('vmem', 'ds') and (p.srcC & c.writes):
            need = max(need, MFMA_C_WAR[p.passes])
    if p.cat == 'salu':
        if ('s', 'm0') in p.writes and c.lds_dma:
            need = max(need, 1)
    if p.cat == 'vmem' and p.wide_store:
        if c.cat == 'valu' and (p.dst & c.writes):
            need = max(need, 2)
        elif c.cat in ('vmem', 'ds', 'mfma') and (p.dst & c.writes):
            need = max(need, 1)
    return need


def worst_case(p):
    if p.cat == 'mfma':
        return MFMA_D_VALU[p.passes]
    if p.cat == 'valu':
        if any(is_s(r) for r in p.writes):
            return 5
        return 2
    if p.cat == 'salu' and ('s', 'm0') in p.writes:
        return 1
    if p.cat == 'vmem' and p.wide_store:
        return 2
    return 0


class Kern:
    def __init__(self, name):
        self.name = name
        self.lines = []
        self.hist = []
        self.nlabel = 0
        self.max_v = 0
        self.max_a = -1
        self.max_s = 0
        self.ninst = 0

    def _track(self, ins):
        for r in ins.reads | ins.writes:
            if r[0] == 'v':
                self.max_v = max(self.max_v, r[1])
            elif r[0] == 'a':
                self.max_a = max(self.max_a, r[1])
            elif r[0] == 's' and isinstance(r[1], int):
                self.max_s = max(self.max_s, r[1])

    def _nop(self, n):
        while n > 0:
            k = min(n, 16)
            t = 's_nop %d' % (k - 1)
            self.lines.append('    ' + t)
            self.hist.append(classify(t))
            self.ninst += 1
            n -= k

    def I(self, text):
        ins = classify(text)
        need = 0
        dist = 0
        for p in reversed(self.hist):
            if dist >= 12:
                break
            r = required(p, ins)
            if r - dist > need:
                need = r - dist
            dist += p.states
        if need > 0:
            self._nop(need)
        self.lines.append('    ' + text)
        self.hist.append(ins)
        if len(self.hist) > 24:
            self.hist = self.hist[-24:]
        self._track(ins)
        self.ninst += 1

    def flush(self):
        need = 0
        dist = 0
        for p in reversed(self.hist):
            if dist >= 12:
                break
            r = worst_case(p)
            if r - dist > need:
                need = r - dist
            dist += p.states
        if need > 0:
            self._nop(need)

    def label(self, name):
        self.flush()
        self.lines.append(name + ':')

    def newlabel(self, base='L'):
        self.nlabel += 1
        return '.%s_%s_%d' % (base, self.name, self.nlabel)

    def branch(self, mn, target):
        self.flush()
        self.I('%s %s' % (mn, target))

    def C(self, text):
        self.lines.append('    ; ' + text)

    def text(self):
        return '\n'.join(self.lines)

    def descriptor(self, extra_v=0):
        nv = self.max_v + 1
        acc = ((nv + 3) // 4) * 4
        if acc < 4:
            acc = 4
        if self.max_a >= 0:
            nfv = acc + self.max_a + 1
        else:
            nfv = nv
        ns = max(self.max_s + 1, 8)
        return ('.amdhsa_kernel %s\n'
                '  .amdhsa_next_free_vgpr %d\n'
                '  .amdhsa_next_free_sgpr %d\n'
                '  .amdhsa_accum_offset %d\n'
                '  .amdhsa_group_segment_fixed_size 0\n'
                '  .amdhsa_kernarg_size 96\n'
                '  .amdhsa_user_sgpr_count 2\n'
                '  .amdhsa_user_sgpr_kernarg_segment_ptr 1\n'
                '  .amdhsa_system_sgpr_workgroup_id_x 1\n'
                '  .amdhsa_float_denorm_mode_32 3\n'
                '.end_amdhsa_kernel\n') % (self.name, nfv, ns, acc)
```

```python
from asmlib import Kern

S = 2048
D = 576
H = 32
DH = 18
F = 4608

KA_X, KA_WQKV, KA_WPHI, KA_WO, KA_BX, KA_W1, KA_B1, KA_W2, KA_B2, KA_OUT, KA_DBG, KA_WS = [8 * i for i in range(12)]

OFF_WQKV = 0x0000000
SZ_WQKV = 8 * 18 * 14 * 1024
OFF_CSQKV = 0x0200000
SZ_CSQKV = 6 * 8 * 14 * 16 * 4
OFF_CS1 = 0x0210000
SZ_CS1 = 4608 * 4
OFF_WO = 0x0400000
SZ_WO = 4 * 8 * 3 * 9 * 1024
OFF_W1 = 0x0800000
SZ_W1 = 32 * 18 * 9 * 1024
OFF_W2 = 0x1000000
SZ_W2 = 8 * 144 * 5 * 1024
OFF_X = 0x1800000
SZ_X = 128 * 18 * 1024
STRIDE_X = 0x280000
OFF_STATS = 0x2200000
SZ_STATS = 2048 * 16 * 8
STRIDE_STATS = 0x40000
OFF_KV = 0x2300000
SZ_KV = 32 * 20 * 64 * 4
STRIDE_KV = 0x40000
OFF_PHIQ = 0x2400000
SZ_PHIQ = 2048 * 32 * 80
OFF_H = 0x2A00000
SZ_H = 128 * 144 * 1024

LOG2E = 0x3FB8AA3B


class VM:
    def __init__(self, k):
        self.k = k
        self.q = []

    def issue(self, tag):
        self.q.append(tag)

    def wait(self, tag):
        cand = [i for i, t in enumerate(self.q) if t == tag]
        if not cand:
            return
        idx = max(cand)
        n = len(self.q) - 1 - idx
        assert n <= 63
        self.k.I('s_waitcnt vmcnt(%d)' % n)
        self.q = self.q[idx + 1:]

    def wait_all(self):
        self.k.I('s_waitcnt vmcnt(0)')
        self.q = []


def srd(k, sr, base, off, size):
    if off:
        k.I('s_add_u32 s%d, s%d, 0x%x' % (sr, base, off))
        k.I('s_addc_u32 s%d, s%d, 0' % (sr + 1, base + 1))
    else:
        k.I('s_mov_b32 s%d, s%d' % (sr, base))
        k.I('s_mov_b32 s%d, s%d' % (sr + 1, base + 1))
    k.I('s_and_b32 s%d, s%d, 0xffff' % (sr + 1, sr + 1))
    k.I('s_mov_b32 s%d, 0x%x' % (sr + 2, size))
    k.I('s_mov_b32 s%d, 0x20000' % (sr + 3))


def vr(a, n=1):
    return 'v%d' % a if n == 1 else 'v[%d:%d]' % (a, a + n - 1)


def sr4(a):
    return 's[%d:%d]' % (a, a + 3)


def xor_add(k, v, tmp):
    k.I('v_mov_b32 v%d, v%d' % (tmp, v))
    k.I('v_permlane16_swap_b32 v%d, v%d' % (v, tmp))
    k.I('v_add_f32 v%d, v%d, v%d' % (v, v, tmp))
    k.I('v_mov_b32 v%d, v%d' % (tmp, v))
    k.I('v_permlane32_swap_b32 v%d, v%d' % (v, tmp))
    k.I('v_add_f32 v%d, v%d, v%d' % (v, v, tmp))


def round_bf16_pair(k, a, b, tmp):
    k.I('v_cvt_pk_bf16_f32 v%d, v%d, v%d' % (tmp, a, b))
    k.I('v_lshlrev_b32 v%d, 16, v%d' % (a, tmp))
    k.I('v_and_b32 v%d, 0xffff0000, v%d' % (b, tmp))


def round_bf16_one(k, a, tmp):
    k.I('v_cvt_pk_bf16_f32 v%d, v%d, v%d' % (tmp, a, a))
    k.I('v_lshlrev_b32 v%d, 16, v%d' % (a, tmp))


def unpack_pair(k, src, lo, hi):
    k.I('v_lshlrev_b32 v%d, 16, v%d' % (lo, src))
    k.I('v_and_b32 v%d, 0xffff0000, v%d' % (hi, src))


def fbits(x):
    import struct
    return struct.unpack('<I', struct.pack('<f', x))[0]


def stats_combine(k, widths, base, vmean, vr_, t0, t1, t2):
    n = len(widths)
    if n == 1:
        k.I('v_mov_b32 v%d, v%d' % (vmean, base))
        k.I('v_mov_b32 v%d, v%d' % (t1, base + 1))
    else:
        k.I('v_mov_b32 v%d, 0' % vmean)
        for i, w in enumerate(widths):
            k.I('v_mov_b32 v%d, 0x%x' % (t0, fbits(w / 576.0)))
            k.I('v_fmac_f32 v%d, v%d, v%d' % (vmean, t0, base + 2 * i))
        k.I('v_mov_b32 v%d, 0' % t1)
        for i, w in enumerate(widths):
            k.I('v_sub_f32 v%d, v%d, v%d' % (t0, base + 2 * i, vmean))
            k.I('v_mul_f32 v%d, v%d, v%d' % (t0, t0, t0))
            k.I('v_mov_b32 v%d, 0x%x' % (t2, fbits(float(w))))
            k.I('v_fmac_f32 v%d, v%d, v%d' % (t1, t0, t2))
            k.I('v_add_f32 v%d, v%d, v%d' % (t1, t1, base + 2 * i + 1))
    k.I('v_mul_f32 v%d, 0x%x, v%d' % (t1, fbits(1.0 / 576.0), t1))
    round_bf16_pair(k, vmean, t1, t0)
    k.I('v_add_f32 v%d, 0x%x, v%d' % (t1, fbits(1e-5), t1))
    round_bf16_one(k, t1, t0)
    k.I('v_sqrt_f32 v%d, v%d' % (t1, t1))
    round_bf16_one(k, t1, t0)
    k.I('v_rcp_f32 v%d, v%d' % (vr_, t1))


class LdsBase:
    def __init__(self, k, v0, v1, v2):
        self.regs = [v0, v1, v2]
        k.I('v_add_u32 v%d, 0x10000, v%d' % (v1, v0))
        k.I('v_add_u32 v%d, 0x20000, v%d' % (v2, v0))

    def at(self, off):
        return 'v%d offset:%d' % (self.regs[off >> 16], off & 0xffff)

    def atw(self, off):
        return 'v%d' % self.regs[off >> 16], 'offset:%d' % (off & 0xffff)
```

```python
from common import *

OOB = 0x7ff00000
WIDTHS_AFTER_K4 = [40, 32] * 8
WIDTHS_AFTER_K2 = [32, 32, 32, 48] * 4


def load_stats(k, vm, widths, srd_stats, vtok_off, soff, base):
    n = len(widths)
    if n == 1:
        k.I('buffer_load_dwordx2 v[%d:%d], v%d, %s, s%d offen' % (base, base + 1, vtok_off, sr4(srd_stats), soff))
        vm.issue('stats')
    else:
        for i in range(n // 2):
            k.I('buffer_load_dwordx4 v[%d:%d], v%d, %s, s%d offen offset:%d' % (
                base + 4 * i, base + 4 * i + 3, vtok_off, sr4(srd_stats), soff, 16 * i))
            vm.issue('stats')


def softmax18(k, P, OUT, T):
    I = k.I
    E = T
    mx, mn, sm, sc, l2e = T + 18, T + 19, T + 20, T + 21, T + 22
    I('v_max3_f32 v%d, v%d, v%d, v%d' % (mx, P, P + 1, P + 2))
    I('v_min3_f32 v%d, v%d, v%d, v%d' % (mn, P, P + 1, P + 2))
    for i in range(3, 17, 2):
        I('v_max3_f32 v%d, v%d, v%d, v%d' % (mx, mx, P + i, P + i + 1))
        I('v_min3_f32 v%d, v%d, v%d, v%d' % (mn, mn, P + i, P + i + 1))
    I('v_max_f32 v%d, v%d, v%d' % (mx, mx, P + 17))
    I('v_min_f32 v%d, v%d, v%d' % (mn, mn, P + 17))
    I('v_mov_b32 v%d, 0x%x' % (l2e, LOG2E))
    for sign in range(2):
        for i in range(18):
            if sign == 0:
                I('v_sub_f32 v%d, v%d, v%d' % (E + i, P + i, mx))
            else:
                I('v_sub_f32 v%d, v%d, v%d' % (E + i, mn, P + i))
            I('v_mul_f32 v%d, v%d, v%d' % (E + i, E + i, l2e))
        for i in range(18):
            I('v_exp_f32 v%d, v%d' % (E + i, E + i))
        I('v_add_f32 v%d, v%d, v%d' % (sm, E, E + 1))
        for i in range(2, 18):
            I('v_add_f32 v%d, v%d, v%d' % (sm, sm, E + i))
        I('v_rcp_f32 v%d, v%d' % (sc, sm))
        for i in range(18):
            I('v_mul_f32 v%d, v%d, v%d' % (E + i, E + i, sc))
        for i in range(9):
            I('v_cvt_pk_bf16_f32 v%d, v%d, v%d' % (OUT + sign * 9 + i, E + 2 * i, E + 2 * i + 1))


def gen_k1(layer):
    k = Kern('k1l%d_kernel' % layer)
    I = k.I
    vm = VM(k)
    xin = 0 if layer == 0 else 2
    widths = [576] if layer == 0 else WIDTHS_AFTER_K4
    lEnd = k.newlabel('End')
    I('s_cmp_ge_u32 s2, 256')
    k.branch('s_cbranch_scc1', lEnd)
    I('s_load_dwordx2 s[4:5], s[0:1], %d' % KA_WS)
    I('v_and_b32 v1, 63, v0')
    I('v_lshrrev_b32 v2, 6, v0')
    I('v_readfirstlane_b32 s3, v2')
    I('v_and_b32 v3, 15, v1')
    I('v_lshrrev_b32 v4, 4, v1')
    I('v_lshlrev_b32 v5, 4, v1')
    I('s_and_b32 s32, s2, 7')
    I('s_lshr_b32 s33, s2, 3')
    I('s_lshl_b32 s34, s33, 2')
    I('s_add_u32 s34, s34, s3')
    I('s_waitcnt lgkmcnt(0)')
    srd(k, 8, 4, OFF_WQKV, SZ_WQKV)
    srd(k, 12, 4, OFF_X + xin * STRIDE_X, SZ_X)
    srd(k, 16, 4, OFF_STATS + xin * STRIDE_STATS, SZ_STATS)
    srd(k, 20, 4, OFF_CSQKV, SZ_CSQKV)
    srd(k, 24, 4, OFF_PHIQ, SZ_PHIQ)
    srd(k, 28, 4, OFF_KV + layer * STRIDE_KV, SZ_KV)
    XF, ACC, WF = 16, 88, 144
    RING = 3 * 42 * 1024
    CSL = RING
    I('v_lshlrev_b32 v6, 2, v0')
    I('s_mul_i32 s35, s32, %d' % (14 * 64))
    for i in range(6):
        I('s_add_u32 s36, s35, %d' % (i * 8 * 14 * 64))
        I('buffer_load_dword v%d, v6, s[20:23], s36 offen' % (200 + i))
        vm.issue('cs')
    I('v_lshlrev_b32 v7, 7, v3')
    I('s_lshl_b32 s36, s34, 11')
    load_stats(k, vm, widths, 16, 7, 36, 208)
    I('s_mul_i32 s37, s34, %d' % (18 * 1024))
    for ks in range(18):
        I('s_add_u32 s38, s37, %d' % (ks * 1024))
        I('buffer_load_dwordx4 v[%d:%d], v5, s[12:15], s38 offen' % (XF + 4 * ks, XF + 4 * ks + 3))
        vm.issue(('x', ks))
    I('s_lshl_b32 s39, s3, 10')
    I('s_mul_i32 s40, s32, %d' % (18 * 14 * 1024))
    I('s_add_u32 s40, s40, s39')
    I('s_min_u32 s41, s39, 1024')

    def dma_phase(p):
        buf = (p % 3) * 42 * 1024
        for i in range(11):
            if i < 10:
                I('s_add_u32 m0, s39, %d' % (buf + i * 4096))
                I('s_add_u32 s42, s40, %d' % (p * 42 * 1024 + i * 4096))
            else:
                I('s_add_u32 m0, s41, %d' % (buf + i * 4096))
                I('s_sub_u32 s42, s40, s39')
                I('s_add_u32 s42, s42, s41')
                I('s_add_u32 s42, s42, %d' % (p * 42 * 1024 + i * 4096))
            I('buffer_load_dwordx4 v5, s[8:11], s42 offen lds')
            vm.issue(('w', p))
    for p in range(3):
        dma_phase(p)
    vm.wait('cs')
    I('v_add_f32 v200, v200, v201')
    I('v_add_f32 v202, v202, v203')
    I('v_add_f32 v204, v204, v205')
    I('v_add_f32 v200, v200, v202')
    I('v_add_f32 v200, v200, v204')
    I('v_add_u32 v6, %d, v6' % CSL)
    I('ds_write_b32 v6, v200')
    lb = LdsBase(k, 5, 2, 15)
    vm.wait('stats')
    VMEAN, VR = 8, 9
    stats_combine(k, widths, 208, VMEAN, VR, 10, 11, 12)
    for i in range(56):
        I('v_mov_b32 v%d, 0' % (ACC + i))
    for p in range(6):
        vm.wait(('w', p))
        I('s_barrier')
        if p >= 1 and p + 2 < 6:
            dma_phase(p + 2)
        buf = (p % 3) * 42 * 1024
        groups = [(kk, h) for kk in range(3) for h in range(2)]

        def rd(gi):
            kk, h = groups[gi]
            for tl in range(7):
                tile = h * 7 + tl
                reg = WF + (gi % 2) * 28 + 4 * tl
                I('ds_read_b128 v[%d:%d], %s' % (reg, reg + 3, lb.at(buf + (kk * 14 + tile) * 1024)))
        rd(0)
        for gi in range(6):
            kk, h = groups[gi]
            ks = p * 3 + kk
            if h == 0 and p == 0:
                vm.wait(('x', ks)) if any(t == ('x', ks) for t in vm.q) else None
            if gi + 1 < 6:
                rd(gi + 1)
            for tl in range(7):
                tile = h * 7 + tl
                reg = WF + (gi % 2) * 28 + 4 * tl
                outstanding = (7 if gi + 1 < 6 else 0) + 6 - tl
                I('s_waitcnt lgkmcnt(%d)' % outstanding)
                I('v_mfma_f32_16x16x32_bf16 v[%d:%d], v[%d:%d], v[%d:%d], v[%d:%d]' % (
                    ACC + 4 * tile, ACC + 4 * tile + 3, reg, reg + 3, XF + 4 * ks, XF + 4 * ks + 3,
                    ACC + 4 * tile, ACC + 4 * tile + 3))
    I('s_barrier')
    CS = 144
    I('v_lshlrev_b32 v6, 4, v4')
    I('v_add_u32 v6, %d, v6' % CSL)
    for tile in range(14):
        I('ds_read_b128 v[%d:%d], v6 offset:%d' % (CS + 4 * tile, CS + 4 * tile + 3, tile * 64))
    for tile in range(14):
        I('s_waitcnt lgkmcnt(%d)' % (13 - tile))
        for r in range(4):
            s = tile * 4 + r
            if s >= 54:
                continue
            I('v_fma_f32 v%d, -v%d, v%d, v%d' % (ACC + s, VMEAN, CS + s, ACC + s))
            I('v_mul_f32 v%d, v%d, v%d' % (ACC + s, ACC + s, VR))
    for s in range(0, 54, 2):
        round_bf16_pair(k, ACC + s, ACC + s + 1, 10)
    OUTQ = 16
    T = 40
    softmax18(k, ACC, OUTQ, T)
    I('v_mov_b32 v%d, 0' % (OUTQ + 18))
    I('v_mov_b32 v%d, 0' % (OUTQ + 19))
    I('v_mul_u32_u24 v6, %d, v3' % (32 * 80))
    I('v_mul_u32_u24 v7, 80, v4')
    I('v_add_u32 v6, v6, v7')
    I('s_mul_i32 s43, s34, %d' % (16 * 32 * 80))
    I('s_mul_i32 s44, s32, %d' % (4 * 80))
    I('s_add_u32 s43, s43, s44')
    for i in range(5):
        I('buffer_store_dwordx4 v[%d:%d], v6, s[24:27], s43 offen offset:%d' % (OUTQ + 4 * i, OUTQ + 4 * i + 3, 16 * i))
    OUTK = 64
    softmax18(k, ACC + 18, OUTK, T)
    OUTV = 64 + 18
    for i in range(9):
        I('v_cvt_pk_bf16_f32 v%d, v%d, v%d' % (OUTV + i, ACC + 36 + 2 * i, ACC + 36 + 2 * i + 1))
    PITCH = 144
    HSTR = 80 * PITCH
    I('v_mul_u32_u24 v6, %d, v4' % HSTR)
    I('v_lshl_add_u32 v6, v3, 1, v6')
    I('s_lshl_b32 s45, s3, 5')
    I('v_add_u32 v6, s45, v6')
    for f in range(36):
        mn = 'ds_write_b16' if f % 2 == 0 else 'ds_write_b16_d16_hi'
        I('%s v6, v%d offset:%d' % (mn, OUTK + f // 2, f * PITCH))
    for d in range(18):
        mn = 'ds_write_b16' if d % 2 == 0 else 'ds_write_b16_d16_hi'
        I('%s v6, v%d offset:%d' % (mn, OUTV + d // 2, (48 + d) * PITCH))
    I('s_waitcnt lgkmcnt(0)')
    I('s_barrier')
    I('v_mul_u32_u24 v6, %d, v3' % PITCH)
    I('v_lshl_add_u32 v6, v4, 4, v6')
    I('s_mul_i32 s45, s3, %d' % HSTR)
    I('v_add_u32 v6, s45, v6')
    AF = 16
    BF = 32
    C = 56
    for mt in range(2):
        for ks in range(2):
            r = AF + (mt * 2 + ks) * 4
            I('ds_read_b128 v[%d:%d], v6 offset:%d' % (r, r + 3, (48 + 16 * mt) * PITCH + 64 * ks))
    for nt in range(3):
        for ks in range(2):
            r = BF + (nt * 2 + ks) * 4
            I('ds_read_b128 v[%d:%d], v6 offset:%d' % (r, r + 3, (16 * nt) * PITCH + 64 * ks))
    for i in range(24):
        I('v_mov_b32 v%d, 0' % (C + i))
    I('v_mov_b32 v10, 0')
    I('v_mov_b32 v11, 0x3f803f80')
    I('v_cmp_eq_u32 vcc, 2, v3')
    I('v_cndmask_b32 v10, v10, v11, vcc')
    I('v_cmp_gt_u32 s[46:47], 2, v3')
    I('v_cmp_gt_u32 s[48:49], 4, v3')
    I('v_mov_b32 v11, 0')
    I('s_waitcnt lgkmcnt(0)')
    for ks in range(2):
        for r in range(4):
            a = AF + (2 + ks) * 4 + r
            I('v_cndmask_b32 v%d, v10, v%d, s[46:47]' % (a, a))
            b = BF + (4 + ks) * 4 + r
            I('v_cndmask_b32 v%d, v11, v%d, s[48:49]' % (b, b))
    for ks in range(2):
        for mt in range(2):
            for nt in range(3):
                a = AF + (mt * 2 + ks) * 4
                b = BF + (nt * 2 + ks) * 4
                c = C + (mt * 3 + nt) * 4
                I('v_mfma_f32_16x16x32_bf16 v[%d:%d], v[%d:%d], v[%d:%d], v[%d:%d]' % (
                    c, c + 3, a, a + 3, b, b + 3, c, c + 3))
    I('s_lshl_b32 s50, s32, 2')
    I('s_add_u32 s50, s50, s3')
    I('s_mul_i32 s50, s50, %d' % (20 * 256))
    I('v_lshlrev_b32 v6, 10, v4')
    I('v_lshl_add_u32 v6, v3, 2, v6')
    I('v_mov_b32 v12, 0x%x' % OOB)
    I('v_cndmask_b32 v7, v12, v6, s[48:49]')
    I('v_lshlrev_b32 v13, 2, v3')
    I('v_add_u32 v13, %d, v13' % (16 * 256))
    I('v_cmp_eq_u32 vcc, 0, v4')
    I('v_cndmask_b32 v13, v12, v13, vcc')
    I('v_cndmask_b32 v14, v12, v13, s[48:49]')
    for mt in range(2):
        for nt in range(3):
            for r in range(4 if mt == 0 else 3):
                c = C + (mt * 3 + nt) * 4 + r
                vo = (6 if nt < 2 else 7) if mt == 0 else (13 if nt < 2 else 14)
                I('buffer_atomic_add_f32 v%d, v%d, s[28:31], s50 offen offset:%d' % (c, vo, r * 256 + nt * 64))
    k.label(lEnd)
    I('s_endpgm')
    return k, 256, 256, RING + 1024
```

```python
from common import *

OOB = 0x7ff00000


def stats_partial(k, vals, valid_mask_pair, width, vsum, vm2, tmp, tmp2):
    I = k.I
    I('v_mov_b32 v%d, 0' % vsum)
    for reg, masked in vals:
        if masked:
            I('v_cndmask_b32 v%d, 0, v%d, s[%d:%d]' % (tmp, reg, valid_mask_pair, valid_mask_pair + 1))
            I('v_add_f32 v%d, v%d, v%d' % (vsum, vsum, tmp))
        else:
            I('v_add_f32 v%d, v%d, v%d' % (vsum, vsum, reg))
    xor_add(k, vsum, tmp)
    I('v_mul_f32 v%d, 0x%x, v%d' % (vsum, fbits(1.0 / width), vsum))
    I('v_mov_b32 v%d, 0' % vm2)
    for reg, masked in vals:
        I('v_sub_f32 v%d, v%d, v%d' % (tmp, reg, vsum))
        if masked:
            I('v_cndmask_b32 v%d, 0, v%d, s[%d:%d]' % (tmp, tmp, valid_mask_pair, valid_mask_pair + 1))
        I('v_fmac_f32 v%d, v%d, v%d' % (vm2, tmp, tmp))
    xor_add(k, vm2, tmp)


def gen_k2(layer):
    k = Kern('k2l%d_kernel' % layer)
    I = k.I
    vm = VM(k)
    xin = 0 if layer == 0 else 2
    xout = xin + 1
    lEnd = k.newlabel('End')
    I('s_cmp_ge_u32 s2, 256')
    k.branch('s_cbranch_scc1', lEnd)
    I('s_load_dwordx2 s[4:5], s[0:1], %d' % KA_WS)
    I('v_and_b32 v1, 63, v0')
    I('v_lshrrev_b32 v2, 6, v0')
    I('v_readfirstlane_b32 s3, v2')
    I('v_and_b32 v3, 15, v1')
    I('v_lshrrev_b32 v4, 4, v1')
    I('v_lshlrev_b32 v5, 4, v1')
    I('s_and_b32 s32, s2, 3')
    I('s_lshr_b32 s33, s2, 2')
    I('s_waitcnt lgkmcnt(0)')
    srd(k, 8, 4, OFF_WO, SZ_WO)
    srd(k, 12, 4, OFF_X + xin * STRIDE_X, SZ_X)
    srd(k, 16, 4, OFF_X + xout * STRIDE_X, SZ_X)
    srd(k, 20, 4, OFF_STATS + xout * STRIDE_STATS, SZ_STATS)
    srd(k, 24, 4, OFF_PHIQ, SZ_PHIQ)
    srd(k, 28, 4, OFF_KV + layer * STRIDE_KV, SZ_KV)
    WO = 16
    ACC = 124
    OB = 196
    CR = 220
    KRAW = ACC
    KF = ACC + 32
    PF = ACC + 48
    I('v_lshlrev_b32 v6, 8, v3')
    I('v_lshl_add_u32 v6, v4, 5, v6')
    I('v_mov_b32 v7, 19')
    I('v_and_b32 v8, 3, v3')
    I('v_cmp_eq_u32 vcc, 2, v8')
    I('v_cndmask_b32 v7, v7, 18, vcc')
    I('v_add_u32 v8, 16, v3')
    I('v_cmp_gt_u32 vcc, 2, v3')
    I('v_cndmask_b32 v7, v7, v8, vcc')
    I('v_lshlrev_b32 v7, 8, v7')
    I('v_lshl_add_u32 v7, v4, 5, v7')
    I('v_mul_u32_u24 v8, %d, v3' % (32 * 80))
    I('v_lshl_add_u32 v9, v4, 4, v8')
    I('s_mul_i32 s34, s33, %d' % (32 * 32 * 80))
    I('s_mul_i32 s35, s3, %d' % (4 * 80))
    I('s_add_u32 s34, s34, s35')
    I('s_mul_i32 s36, s3, %d' % (4 * 20 * 256))

    def load_head(hh):
        I('s_add_u32 s37, s36, %d' % (hh * 20 * 256))
        for mt in range(2):
            for ks in range(2):
                r = KRAW + (mt * 2 + ks) * 8
                for hf in range(2):
                    I('buffer_load_dwordx4 v[%d:%d], v%d, s[28:31], s37 offen offset:%d' % (
                        r + 4 * hf, r + 4 * hf + 3, 6 + mt, ks * 128 + hf * 16))
                    vm.issue(('kv', hh))
        for tt in range(2):
            I('s_add_u32 s38, s34, %d' % (tt * 16 * 32 * 80 + hh * 80))
            r = PF + tt * 8
            I('buffer_load_dwordx4 v[%d:%d], v9, s[24:27], s38 offen' % (r, r + 3))
            vm.issue(('pq', hh))
            I('buffer_load_dwordx4 v[%d:%d], v8, s[24:27], s38 offen offset:64' % (r + 4, r + 7))
            vm.issue(('pq', hh))

    load_head(0)
    I('s_lshl_b32 s39, s32, 3')
    I('s_add_u32 s39, s39, s3')
    I('s_mul_i32 s39, s39, %d' % (27 * 1024))
    for i in range(27):
        I('s_add_u32 s40, s39, %d' % (i * 1024))
        I('buffer_load_dwordx4 v[%d:%d], v5, s[8:11], s40 offen' % (WO + 4 * i, WO + 4 * i + 3))
        vm.issue('wo')
    I('v_mov_b32 v10, 0x%x' % fbits(1e-6))
    for hh in range(4):
        vm.wait(('kv', hh))
        for fr in range(4):
            for r in range(4):
                I('v_cvt_pk_bf16_f32 v%d, v%d, v%d' % (KF + fr * 4 + r, KRAW + fr * 8 + 2 * r, KRAW + fr * 8 + 2 * r + 1))
        vm.wait(('pq', hh))
        for tt in range(2):
            for mt in range(2):
                c = CR + (tt * 2 + mt) * 4
                for ks in range(2):
                    a = KF + (mt * 2 + ks) * 4
                    b = PF + tt * 8 + ks * 4
                    src = '0' if ks == 0 else 'v[%d:%d]' % (c, c + 3)
                    I('v_mfma_f32_16x16x32_bf16 v[%d:%d], v[%d:%d], v[%d:%d], %s' % (c, c + 3, a, a + 3, b, b + 3, src))
        if hh + 1 < 4:
            load_head(hh + 1)
        for tt in range(2):
            c0 = CR + (tt * 2) * 4
            c1 = c0 + 4
            round_bf16_pair(k, c0, c0 + 1, 11)
            round_bf16_pair(k, c0 + 2, c0 + 3, 11)
            round_bf16_pair(k, c1, c1 + 1, 11)
            round_bf16_one(k, c1 + 2, 11)
            I('v_add_f32 v%d, v%d, v10' % (c1 + 2, c1 + 2))
            round_bf16_one(k, c1 + 2, 11)
            I('v_rcp_f32 v%d, v%d' % (c1 + 2, c1 + 2))
            for r in (c0, c0 + 1, c0 + 2, c0 + 3, c1, c1 + 1):
                I('v_mul_f32 v%d, v%d, v%d' % (r, r, c1 + 2))
            ob = OB + tt * 12 + hh * 3
            I('v_cvt_pk_bf16_f32 v%d, v%d, v%d' % (ob, c0, c0 + 1))
            I('v_cvt_pk_bf16_f32 v%d, v%d, v%d' % (ob + 1, c0 + 2, c0 + 3))
            I('v_cvt_pk_bf16_f32 v%d, v%d, v%d' % (ob + 2, c1, c1 + 1))
    vm.wait('wo')
    for ks in range(3):
        for tile in range(9):
            for tt in range(2):
                a = WO + (ks * 9 + tile) * 4
                b = OB + tt * 12 + ks * 4
                c = ACC + (tt * 9 + tile) * 4
                src = '0' if ks == 0 else 'v[%d:%d]' % (c, c + 3)
                I('v_mfma_f32_16x16x32_bf16 v[%d:%d], v[%d:%d], v[%d:%d], %s' % (c, c + 3, a, a + 3, b, b + 3, src))
    I('s_mul_i32 s41, s3, %d' % (18 * 1024))
    I('v_add_u32 v6, s41, v5')
    for i in range(18):
        I('ds_write_b128 v6, v[%d:%d] offset:%d' % (ACC + 4 * i, ACC + 4 * i + 3, i * 1024))
    I('s_lshr_b32 s42, s3, 2')
    I('s_and_b32 s43, s3, 3')
    I('s_mul_i32 s44, s42, 9')
    I('s_lshl_b32 s45, s43, 1')
    I('s_add_u32 s44, s44, s45')
    I('s_lshl_b32 s44, s44, 10')
    I('v_add_u32 v7, s44, v5')
    I('s_mul_i32 s46, s42, 9216')
    I('s_add_u32 s46, s46, 8192')
    I('v_add_u32 v8, s46, v5')
    I('s_lshl_b32 s47, s33, 1')
    I('s_add_u32 s47, s47, s42')
    I('s_mul_i32 s48, s32, 18')
    I('s_lshl_b32 s49, s43, 2')
    I('s_add_u32 s49, s49, s48')
    I('v_add_u32 v9, s49, v4')
    I('v_lshrrev_b32 v10, 2, v9')
    I('v_and_b32 v11, 3, v9')
    I('v_lshlrev_b32 v10, 10, v10')
    I('v_lshl_add_u32 v10, v11, 8, v10')
    I('v_lshl_add_u32 v10, v3, 4, v10')
    I('v_lshrrev_b32 v9, 1, v4')
    I('v_add_u32 v9, s48, v9')
    I('v_add_u32 v9, 16, v9')
    I('v_lshrrev_b32 v12, 2, v9')
    I('v_and_b32 v11, 3, v9')
    I('v_lshlrev_b32 v12, 10, v12')
    I('v_lshl_add_u32 v12, v11, 8, v12')
    I('v_lshl_add_u32 v12, v3, 4, v12')
    I('v_and_b32 v11, 1, v4')
    I('v_lshl_add_u32 v12, v11, 3, v12')
    I('s_mul_i32 s50, s47, %d' % (18 * 1024))
    RES = 16
    I('buffer_load_dwordx4 v[%d:%d], v10, s[12:15], s50 offen' % (RES, RES + 3))
    I('buffer_load_dwordx2 v[%d:%d], v12, s[12:15], s50 offen' % (RES + 4, RES + 5))
    I('s_waitcnt lgkmcnt(0)')
    I('s_barrier')
    lb7 = LdsBase(k, 7, 108, 109)
    lb8 = LdsBase(k, 8, 110, 111)
    RD = 32
    SUM = 24
    for src in range(8):
        for tl in range(2):
            r = RD + src * 8 + tl * 4
            I('ds_read_b128 v[%d:%d], %s' % (r, r + 3, lb7.at(src * 18 * 1024 + tl * 1024)))
    I('s_waitcnt lgkmcnt(0)')
    for r in range(8):
        I('v_add_f32 v%d, v%d, v%d' % (SUM + r, RD + r, RD + 8 + r))
        for src in range(2, 8):
            I('v_add_f32 v%d, v%d, v%d' % (SUM + r, SUM + r, RD + src * 8 + r))
    SO = 128
    lno = k.newlabel('noodd')
    ljoin = k.newlabel('join')
    I('s_waitcnt vmcnt(0)')
    for r in range(0, 8, 2):
        round_bf16_pair(k, SUM + r, SUM + r + 1, 11)
    for i in range(4):
        unpack_pair(k, RES + i, 13, 14)
        I('v_add_f32 v%d, v%d, v13' % (SUM + 2 * i, SUM + 2 * i))
        I('v_add_f32 v%d, v%d, v14' % (SUM + 2 * i + 1, SUM + 2 * i + 1))
    for i in range(4):
        I('v_cvt_pk_bf16_f32 v%d, v%d, v%d' % (100 + i, SUM + 2 * i, SUM + 2 * i + 1))
    I('buffer_store_dwordx4 v[100:103], v10, s[16:19], s50 offen')
    for i in range(4):
        unpack_pair(k, 100 + i, SUM + 2 * i, SUM + 2 * i + 1)
    I('v_lshlrev_b32 v9, 7, v3')
    I('v_mov_b32 v11, 0x%x' % OOB)
    I('v_cmp_gt_u32 vcc, 16, v1')
    I('v_cndmask_b32 v9, v11, v9, vcc')
    I('s_lshl_b32 s51, s47, 11')
    I('s_lshl_b32 s52, s32, 5')
    I('s_add_u32 s51, s51, s52')
    I('s_lshl_b32 s52, s43, 3')
    I('s_add_u32 s51, s51, s52')
    I('s_cmp_eq_u32 s43, 3')
    k.branch('s_cbranch_scc0', lno)
    for src in range(8):
        r = RD + src * 4
        I('ds_read_b128 v[%d:%d], %s' % (r, r + 3, lb8.at(src * 18 * 1024)))
    I('s_waitcnt lgkmcnt(0)')
    for r in range(4):
        I('v_add_f32 v%d, v%d, v%d' % (SO + r, RD + r, RD + 4 + r))
        for src in range(2, 8):
            I('v_add_f32 v%d, v%d, v%d' % (SO + r, SO + r, RD + src * 4 + r))
    for r in range(0, 4, 2):
        round_bf16_pair(k, SO + r, SO + r + 1, 11)
    for i in range(2):
        unpack_pair(k, RES + 4 + i, 13, 14)
        I('v_add_f32 v%d, v%d, v13' % (SO + 2 * i, SO + 2 * i))
        I('v_add_f32 v%d, v%d, v14' % (SO + 2 * i + 1, SO + 2 * i + 1))
    for i in range(2):
        I('v_cvt_pk_bf16_f32 v%d, v%d, v%d' % (104 + i, SO + 2 * i, SO + 2 * i + 1))
    I('buffer_store_dwordx2 v[104:105], v12, s[16:19], s50 offen')
    for i in range(2):
        unpack_pair(k, 104 + i, SO + 2 * i, SO + 2 * i + 1)
    stats_partial(k, [(SUM + r, False) for r in range(8)] + [(SO + r, False) for r in range(4)], 0, 48, 106, 107, 11, 12)
    I('buffer_store_dwordx2 v[106:107], v9, s[20:23], s51 offen')
    k.branch('s_branch', ljoin)
    k.label(lno)
    stats_partial(k, [(SUM + r, False) for r in range(8)], 0, 32, 106, 107, 11, 12)
    I('buffer_store_dwordx2 v[106:107], v9, s[20:23], s51 offen')
    k.label(ljoin)
    k.label(lEnd)
    I('s_endpgm')
    return k, 256, 512, 8 * 18 * 1024
```

```python
from common import *
from k1 import load_stats, WIDTHS_AFTER_K2

OOB = 0x7ff00000


def gen_k3(layer):
    k = Kern('k3l%d_kernel' % layer)
    I = k.I
    vm = VM(k)
    xin = 1 if layer == 0 else 3
    widths = WIDTHS_AFTER_K2
    lEnd = k.newlabel('End')
    I('s_cmp_ge_u32 s2, 256')
    k.branch('s_cbranch_scc1', lEnd)
    I('s_load_dwordx2 s[4:5], s[0:1], %d' % KA_WS)
    I('s_load_dwordx2 s[6:7], s[0:1], %d' % KA_B1)
    I('v_and_b32 v1, 63, v0')
    I('v_lshrrev_b32 v2, 6, v0')
    I('v_readfirstlane_b32 s3, v2')
    I('v_and_b32 v3, 15, v1')
    I('v_lshrrev_b32 v4, 4, v1')
    I('v_lshlrev_b32 v5, 4, v1')
    I('s_and_b32 s32, s2, 7')
    I('s_lshr_b32 s33, s2, 3')
    I('s_and_b32 s34, s33, 3')
    I('s_lshl_b32 s32, s32, 2')
    I('s_add_u32 s32, s32, s34')
    I('s_lshr_b32 s33, s33, 2')
    I('s_lshl_b32 s34, s33, 4')
    I('s_lshl_b32 s35, s3, 1')
    I('s_add_u32 s34, s34, s35')
    I('s_waitcnt lgkmcnt(0)')
    srd(k, 8, 4, OFF_W1, SZ_W1)
    srd(k, 12, 4, OFF_X + xin * STRIDE_X, SZ_X)
    srd(k, 16, 4, OFF_STATS + xin * STRIDE_STATS, SZ_STATS)
    srd(k, 20, 4, OFF_CS1, SZ_CS1)
    srd(k, 24, 6, 0, 4608 * 2)
    srd(k, 28, 4, OFF_H, SZ_H)
    lb = LdsBase(k, 5, 2, 0)
    NX = 8
    XF = 16
    ACC = 80
    WF = 152
    ST = 192
    I('v_lshlrev_b32 v7, 7, v3')
    I('s_lshl_b32 s36, s34, 11')
    I('s_add_u32 s37, s36, 2048')
    load_stats(k, vm, widths, 16, 7, 36, ST)
    load_stats(k, vm, widths, 16, 7, 37, ST + 32)
    I('s_mul_i32 s38, s34, %d' % (18 * 1024))

    def xload(ks):
        for tt in range(2):
            r = XF + (ks % NX) * 8 + tt * 4
            I('s_add_u32 s39, s38, %d' % (tt * 18 * 1024 + ks * 1024))
            I('buffer_load_dwordx4 v[%d:%d], v5, s[12:15], s39 offen' % (r, r + 3))
            vm.issue(('x', ks))
    I('s_lshl_b32 s40, s3, 10')
    I('s_mul_i32 s41, s32, %d' % (162 * 1024))
    I('s_add_u32 s42, s41, s40')
    I('s_min_u32 s43, s40, %d' % (3 * 1024))
    I('s_min_u32 s44, s40, 1024')

    def dma_phase(p):
        nblk = 36 if p < 4 else 18
        lds0 = p * 36 * 1024 if p < 4 else 0
        g0 = p * 36 * 1024
        rounds = (nblk + 7) // 8
        for i in range(rounds):
            last = (i == rounds - 1)
            if not last:
                I('s_add_u32 m0, s40, %d' % (lds0 + i * 8192))
                I('s_add_u32 s45, s42, %d' % (g0 + i * 8192))
            else:
                cl = 43 if p < 4 else 44
                I('s_add_u32 m0, s%d, %d' % (cl, lds0 + i * 8192))
                I('s_add_u32 s45, s41, s%d' % cl)
                I('s_add_u32 s45, s45, %d' % (g0 + i * 8192))
            I('buffer_load_dwordx4 v5, s[8:11], s45 offen lds')
            vm.issue(('w', p))
    for ks in range(4):
        xload(ks)
    dma_phase(0)
    for ks in range(4, NX - 1):
        xload(ks)
    for p in range(1, 4):
        dma_phase(p)
    vm.wait('stats')
    VM0, VR0, VM1, VR1 = 8, 9, 10, 11
    stats_combine(k, widths, ST, VM0, VR0, 12, 13, 14)
    stats_combine(k, widths, ST + 32, VM1, VR1, 12, 13, 14)
    for i in range(72):
        I('v_mov_b32 v%d, 0' % (ACC + i))
    groups = [(ks, h) for ks in range(18) for h in range(2)]

    def lds_off(ks):
        return (ks * 9 * 1024) if ks < 16 else ((ks - 16) * 9 * 1024)

    def rd(gi):
        ks, h = groups[gi]
        tiles = range(0, 5) if h == 0 else range(5, 9)
        for n, tile in enumerate(tiles):
            reg = WF + (gi % 2) * 20 + 4 * n
            I('ds_read_b128 v[%d:%d], %s' % (reg, reg + 3, lb.at(lds_off(ks) + tile * 1024)))
        return len(tiles)

    pending_next = 0
    for gi in range(36):
        ks, h = groups[gi]
        if h == 0 and ks % 4 == 0:
            p = ks // 4
            vm.wait(('w', p))
            I('s_barrier')
            if p == 1:
                dma_phase(4)
            rd(gi)
        if h == 0:
            if any(t == ('x', ks) for t in vm.q):
                vm.wait(('x', ks))
        nxt = 0
        if gi + 1 < 36:
            ks2, h2 = groups[gi + 1]
            if not (h2 == 0 and ks2 % 4 == 0):
                nxt = rd(gi + 1)
        tiles = list(range(0, 5) if h == 0 else range(5, 9))
        for n, tile in enumerate(tiles):
            reg = WF + (gi % 2) * 20 + 4 * n
            I('s_waitcnt lgkmcnt(%d)' % (nxt + len(tiles) - 1 - n))
            for tt in range(2):
                c = ACC + (tt * 9 + tile) * 4
                x = XF + (ks % NX) * 8 + tt * 4
                I('v_mfma_f32_16x16x32_bf16 v[%d:%d], v[%d:%d], v[%d:%d], v[%d:%d]' % (
                    c, c + 3, reg, reg + 3, x, x + 3, c, c + 3))
        if h == 1 and ks + NX - 1 < 18:
            xload(ks + NX - 1)
    CSR = 16
    BR = 56
    I('v_lshlrev_b32 v6, 5, v4')
    I('v_lshlrev_b32 v7, 4, v4')
    I('v_lshlrev_b32 v12, 3, v4')
    I('s_mul_i32 s46, s32, %d' % (144 * 4))
    I('s_mul_i32 s47, s32, %d' % (144 * 2))
    for p in range(4):
        I('buffer_load_dwordx4 v[%d:%d], v6, s[20:23], s46 offen offset:%d' % (CSR + 8 * p, CSR + 8 * p + 3, 128 * p))
        I('buffer_load_dwordx4 v[%d:%d], v6, s[20:23], s46 offen offset:%d' % (CSR + 8 * p + 4, CSR + 8 * p + 7, 128 * p + 16))
        I('buffer_load_dwordx4 v[%d:%d], v7, s[24:27], s47 offen offset:%d' % (BR + 4 * p, BR + 4 * p + 3, 64 * p))
    I('buffer_load_dwordx4 v[%d:%d], v7, s[20:23], s46 offen offset:512' % (CSR + 32, CSR + 35))
    I('buffer_load_dwordx2 v[%d:%d], v12, s[24:27], s47 offen offset:256' % (BR + 16, BR + 17))
    I('s_mul_i32 s48, s32, 18')
    I('v_add_u32 v13, s48, v4')
    I('v_lshrrev_b32 v14, 2, v13')
    I('v_and_b32 v15, 3, v13')
    I('v_lshlrev_b32 v14, 10, v14')
    I('v_lshl_add_u32 v14, v15, 8, v14')
    I('v_lshl_add_u32 v14, v3, 4, v14')
    I('v_lshrrev_b32 v13, 1, v4')
    I('v_add_u32 v13, s48, v13')
    I('v_add_u32 v13, 16, v13')
    I('v_lshrrev_b32 v6, 2, v13')
    I('v_and_b32 v15, 3, v13')
    I('v_lshlrev_b32 v6, 10, v6')
    I('v_lshl_add_u32 v6, v15, 8, v6')
    I('v_lshl_add_u32 v6, v3, 4, v6')
    I('v_and_b32 v15, 1, v4')
    I('v_lshl_add_u32 v6, v15, 3, v6')
    I('s_mul_i32 s49, s34, %d' % (144 * 1024))
    I('s_add_u32 s50, s49, %d' % (144 * 1024))
    I('s_waitcnt vmcnt(0)')
    BF = 152
    for i in range(18):
        unpack_pair(k, BR + i, BF + 2 * i, BF + 2 * i + 1)
    OUT = 192
    for tt in range(2):
        vmn, vrr = (VM0, VR0) if tt == 0 else (VM1, VR1)
        for tile in range(9):
            for r in range(4):
                c = ACC + (tt * 9 + tile) * 4 + r
                I('v_fma_f32 v%d, -v%d, v%d, v%d' % (c, vmn, CSR + tile * 4 + r, c))
                I('v_mul_f32 v%d, v%d, v%d' % (c, c, vrr))
            c = ACC + (tt * 9 + tile) * 4
            round_bf16_pair(k, c, c + 1, 15)
            round_bf16_pair(k, c + 2, c + 3, 15)
            for r in range(4):
                I('v_add_f32 v%d, v%d, v%d' % (c + r, c + r, BF + tile * 4 + r))
            round_bf16_pair(k, c, c + 1, 15)
            round_bf16_pair(k, c + 2, c + 3, 15)
            for r in range(4):
                I('v_max_f32 v%d, 0, v%d' % (c + r, c + r))
                I('v_mul_f32 v%d, v%d, v%d' % (c + r, c + r, c + r))
            o = OUT + (tt * 9 + tile) * 2
            I('v_cvt_pk_bf16_f32 v%d, v%d, v%d' % (o, c, c + 1))
            I('v_cvt_pk_bf16_f32 v%d, v%d, v%d' % (o + 1, c + 2, c + 3))
            if tile < 8 and tile % 2 == 1:
                p = tile // 2
                o4 = OUT + (tt * 9 + tile - 1) * 2
                I('buffer_store_dwordx4 v[%d:%d], v14, s[28:31], s%d offen offset:%d' % (o4, o4 + 3, 49 + tt, 1024 * p))
            if tile == 8:
                I('buffer_store_dwordx2 v[%d:%d], v6, s[28:31], s%d offen' % (o, o + 1, 49 + tt))
    k.label(lEnd)
    I('s_endpgm')
    return k, 256, 512, 144 * 1024
```

```python
from common import *
from k2 import stats_partial

OOB = 0x7ff00000


def gen_k4(layer):
    k = Kern('k4l%d_kernel' % layer)
    I = k.I
    vm = VM(k)
    xin = 1 if layer == 0 else 3
    final = (layer == 1)
    lEnd = k.newlabel('End')
    I('s_cmp_ge_u32 s2, 256')
    k.branch('s_cbranch_scc1', lEnd)
    I('s_load_dwordx2 s[4:5], s[0:1], %d' % KA_WS)
    I('s_load_dwordx2 s[6:7], s[0:1], %d' % KA_B2)
    I('s_load_dwordx2 s[52:53], s[0:1], %d' % KA_OUT)
    I('v_and_b32 v1, 63, v0')
    I('v_lshrrev_b32 v2, 6, v0')
    I('v_readfirstlane_b32 s3, v2')
    I('v_and_b32 v3, 15, v1')
    I('v_lshrrev_b32 v4, 4, v1')
    I('v_lshlrev_b32 v5, 4, v1')
    I('s_and_b32 s32, s2, 7')
    I('s_lshr_b32 s33, s2, 3')
    I('s_and_b32 s34, s33, 3')
    I('s_lshl_b32 s32, s32, 2')
    I('s_add_u32 s32, s32, s34')
    I('s_lshr_b32 s33, s33, 2')
    I('s_waitcnt lgkmcnt(0)')
    srd(k, 8, 4, OFF_W2, SZ_W2)
    srd(k, 12, 4, OFF_H, SZ_H)
    srd(k, 16, 4, OFF_X + xin * STRIDE_X, SZ_X)
    if final:
        srd(k, 20, 52, 0, 2048 * 1152)
    else:
        srd(k, 20, 4, OFF_X + 2 * STRIDE_X, SZ_X)
    srd(k, 24, 6, 0, 576 * 2)
    srd(k, 28, 4, OFF_STATS + 2 * STRIDE_STATS, SZ_STATS)
    ACC = 16
    FR = 96
    DEPTH = 4
    I('s_mul_i32 s35, s32, %d' % (4 * 144 * 1024))
    I('s_mul_i32 s36, s3, %d' % (18 * 1024))
    I('s_add_u32 s35, s35, s36')
    I('s_mul_i32 s37, s33, %d' % (144 * 5 * 1024))
    I('s_mul_i32 s38, s3, %d' % (18 * 5 * 1024))
    I('s_add_u32 s37, s37, s38')

    def load(s):
        base = FR + (s % DEPTH) * 36
        I('s_add_u32 s39, s37, %d' % (s * 5120))
        for tile in range(4):
            I('buffer_load_dwordx4 v[%d:%d], v5, s[8:11], s39 offen offset:%d' % (
                base + 16 + 4 * tile, base + 16 + 4 * tile + 3, tile * 1024))
            vm.issue(('f', s))
        I('s_add_u32 s39, s39, 4096')
        I('buffer_load_dwordx4 v[%d:%d], v5, s[8:11], s39 offen' % (base + 32, base + 35))
        vm.issue(('f', s))
        for i in range(4):
            I('s_add_u32 s40, s35, %d' % (i * 144 * 1024 + s * 1024))
            I('buffer_load_dwordx4 v[%d:%d], v5, s[12:15], s40 offen' % (base + 4 * i, base + 4 * i + 3))
            vm.issue(('f', s))
    for s in range(DEPTH - 1):
        load(s)
    for s in range(18):
        if s + DEPTH - 1 < 18:
            load(s + DEPTH - 1)
        vm.wait(('f', s))
        base = FR + (s % DEPTH) * 36
        for i in range(4):
            for tile in range(5):
                a = base + 16 + 4 * tile
                b = base + 4 * i
                c = ACC + (i * 5 + tile) * 4
                src = '0' if s == 0 else 'v[%d:%d]' % (c, c + 3)
                I('v_mfma_f32_16x16x32_bf16 v[%d:%d], v[%d:%d], v[%d:%d], %s' % (c, c + 3, a, a + 3, b, b + 3, src))
    I('s_mul_i32 s41, s3, %d' % (20 * 1024))
    I('v_add_u32 v6, s41, v5')
    for i in range(20):
        I('ds_write_b128 v6, v[%d:%d] offset:%d' % (ACC + 4 * i, ACC + 4 * i + 3, i * 1024))
    I('s_lshr_b32 s42, s3, 1')
    I('s_and_b32 s43, s3, 1')
    I('s_mul_i32 s44, s42, 5')
    I('s_lshl_b32 s45, s43, 1')
    I('s_add_u32 s45, s45, s44')
    I('s_lshl_b32 s45, s45, 10')
    I('v_add_u32 v7, s45, v5')
    I('s_add_u32 s46, s44, 4')
    I('s_lshl_b32 s46, s46, 10')
    I('v_add_u32 v8, s46, v5')
    I('s_lshl_b32 s47, s32, 2')
    I('s_add_u32 s47, s47, s42')
    I('s_mul_i32 s48, s33, 9')
    I('s_lshl_b32 s49, s43, 2')
    I('s_add_u32 s49, s49, s48')
    I('v_add_u32 v9, s49, v4')
    I('v_lshrrev_b32 v10, 2, v9')
    I('v_and_b32 v11, 3, v9')
    I('v_lshlrev_b32 v10, 10, v10')
    I('v_lshl_add_u32 v10, v11, 8, v10')
    I('v_lshl_add_u32 v10, v3, 4, v10')
    I('s_add_u32 s50, s48, 8')
    I('s_lshr_b32 s51, s50, 2')
    I('s_lshl_b32 s51, s51, 10')
    I('s_and_b32 s54, s50, 3')
    I('s_lshl_b32 s54, s54, 8')
    I('s_add_u32 s51, s51, s54')
    I('v_lshlrev_b32 v12, 4, v3')
    I('v_lshl_add_u32 v12, v4, 3, v12')
    I('v_add_u32 v12, s51, v12')
    I('v_mov_b32 v13, 0x%x' % OOB)
    I('v_cmp_gt_u32 s[56:57], 2, v4')
    I('v_cndmask_b32 v12, v13, v12, s[56:57]')
    I('s_mul_i32 s55, s47, %d' % (18 * 1024))
    I('v_lshlrev_b32 v14, 4, v9')
    I('s_lshl_b32 s58, s50, 4')
    I('v_lshlrev_b32 v15, 3, v4')
    I('v_add_u32 v15, s58, v15')
    I('v_cndmask_b32 v15, v13, v15, s[56:57]')
    RES = 96
    BIA = 104
    I('buffer_load_dwordx4 v[%d:%d], v10, s[16:19], s55 offen' % (RES, RES + 3))
    I('buffer_load_dwordx2 v[%d:%d], v12, s[16:19], s55 offen' % (RES + 4, RES + 5))
    I('buffer_load_dwordx4 v[%d:%d], v14, s[24:27], 0 offen' % (BIA, BIA + 3))
    I('buffer_load_dwordx2 v[%d:%d], v15, s[24:27], 0 offen' % (BIA + 4, BIA + 5))
    if final:
        I('v_mul_u32_u24 v10, 1152, v3')
        I('v_lshl_add_u32 v10, v9, 4, v10')
        I('v_mul_u32_u24 v12, 1152, v3')
        I('v_lshl_add_u32 v12, v4, 3, v12')
        I('v_add_u32 v12, s58, v12')
        I('v_cndmask_b32 v12, v13, v12, s[56:57]')
        I('s_mul_i32 s59, s47, %d' % (16 * 1152))
    else:
        I('s_mov_b32 s59, s55')
    I('s_waitcnt lgkmcnt(0)')
    I('s_barrier')
    lb7 = LdsBase(k, 7, 208, 209)
    lb8 = LdsBase(k, 8, 210, 211)
    RD = 128
    SUM = 112
    SO = 120
    for src in range(8):
        for tl in range(2):
            r = RD + src * 8 + tl * 4
            I('ds_read_b128 v[%d:%d], %s' % (r, r + 3, lb7.at(src * 20 * 1024 + tl * 1024)))
    I('s_waitcnt lgkmcnt(0)')
    for r in range(8):
        I('v_add_f32 v%d, v%d, v%d' % (SUM + r, RD + r, RD + 8 + r))
        for src in range(2, 8):
            I('v_add_f32 v%d, v%d, v%d' % (SUM + r, SUM + r, RD + src * 8 + r))
    I('s_waitcnt vmcnt(0)')

    def finish(base, n, res, bia, outreg):
        for r in range(0, n, 2):
            round_bf16_pair(k, base + r, base + r + 1, 11)
        for i in range(n // 2):
            unpack_pair(k, bia + i, 13, 6)
            I('v_add_f32 v%d, v%d, v13' % (base + 2 * i, base + 2 * i))
            I('v_add_f32 v%d, v%d, v6' % (base + 2 * i + 1, base + 2 * i + 1))
        for r in range(0, n, 2):
            round_bf16_pair(k, base + r, base + r + 1, 11)
        for i in range(n // 2):
            unpack_pair(k, res + i, 13, 6)
            I('v_add_f32 v%d, v%d, v13' % (base + 2 * i, base + 2 * i))
            I('v_add_f32 v%d, v%d, v6' % (base + 2 * i + 1, base + 2 * i + 1))
        for i in range(n // 2):
            I('v_cvt_pk_bf16_f32 v%d, v%d, v%d' % (outreg + i, base + 2 * i, base + 2 * i + 1))
    finish(SUM, 8, RES, BIA, 200)
    I('buffer_store_dwordx4 v[200:203], v10, s[20:23], s59 offen')
    lno = k.newlabel('noodd')
    ljoin = k.newlabel('join')
    if not final:
        for i in range(4):
            unpack_pair(k, 200 + i, SUM + 2 * i, SUM + 2 * i + 1)
        I('v_lshlrev_b32 v9, 7, v3')
        I('v_mov_b32 v11, 0x%x' % OOB)
        I('v_cmp_gt_u32 vcc, 16, v1')
        I('v_cndmask_b32 v9, v11, v9, vcc')
        I('s_lshl_b32 s60, s47, 11')
        I('s_lshl_b32 s61, s33, 4')
        I('s_add_u32 s60, s60, s61')
        I('s_lshl_b32 s61, s43, 3')
        I('s_add_u32 s60, s60, s61')
    I('s_cmp_eq_u32 s43, 0')
    k.branch('s_cbranch_scc0', lno)
    for src in range(8):
        r = RD + src * 4
        I('ds_read_b128 v[%d:%d], %s' % (r, r + 3, lb8.at(src * 20 * 1024)))
    I('s_waitcnt lgkmcnt(0)')
    for r in range(4):
        I('v_add_f32 v%d, v%d, v%d' % (SO + r, RD + r, RD + 4 + r))
        for src in range(2, 8):
            I('v_add_f32 v%d, v%d, v%d' % (SO + r, SO + r, RD + src * 4 + r))
    finish(SO, 4, RES + 4, BIA + 4, 204)
    I('buffer_store_dwordx2 v[204:205], v12, s[20:23], s59 offen')
    if not final:
        for i in range(2):
            unpack_pair(k, 204 + i, SO + 2 * i, SO + 2 * i + 1)
        stats_partial(k, [(SUM + r, False) for r in range(8)] + [(SO + r, True) for r in range(4)], 56, 40, 206, 207, 11, 13)
        I('buffer_store_dwordx2 v[206:207], v9, s[28:31], s60 offen')
    k.branch('s_branch', ljoin)
    k.label(lno)
    if not final:
        stats_partial(k, [(SUM + r, False) for r in range(8)], 56, 32, 206, 207, 11, 13)
        I('buffer_store_dwordx2 v[206:207], v9, s[28:31], s60 offen')
    k.label(ljoin)
    k.label(lEnd)
    I('s_endpgm')
    return k, 256, 512, 160 * 1024


def _check():
    pass
```

```python
from common import *

OOB = 0x7ff00000


def gather_frag_pipeline(k, vm, frags, depth, regbase, on_done):
    n = len(frags)

    def issue(i):
        fr = frags[i]
        reg = regbase + 8 * (i % depth)
        for j, (voff, soff_val) in enumerate(fr['loads']):
            sb, imm = soff_val
            if sb is None:
                k.I('s_mov_b32 s60, 0x%x' % imm)
            else:
                k.I('s_add_u32 s60, s%d, 0x%x' % (sb, imm))
            mn = 'buffer_load_ushort' if j % 2 == 0 else 'buffer_load_short_d16_hi'
            k.I('%s v%d, v%d, %s, s60 offen' % (mn, reg + (j // 2) + 4 * (j % 2), voff, sr4(fr['srd'])))
            vm.issue(('f', i))

    for i in range(min(depth - 1, n)):
        issue(i)
    for i in range(n):
        if i + depth - 1 < n:
            issue(i + depth - 1)
        vm.wait(('f', i))
        reg = regbase + 8 * (i % depth)
        for r in range(4):
            k.I('v_and_b32 v%d, 0xffff0000, v%d' % (reg + 4 + r, reg + 4 + r))
            k.I('v_or_b32 v%d, v%d, v%d' % (reg + r, reg + r, reg + 4 + r))
        on_done(i, reg)


def gen_prep():
    k = Kern('prep_kernel')
    I = k.I
    I('s_load_dwordx2 s[4:5], s[0:1], %d' % KA_WS)
    I('s_load_dwordx2 s[6:7], s[0:1], %d' % KA_X)
    I('s_load_dwordx2 s[8:9], s[0:1], %d' % KA_WQKV)
    I('s_load_dwordx2 s[10:11], s[0:1], %d' % KA_WPHI)
    I('s_load_dwordx2 s[12:13], s[0:1], %d' % KA_WO)
    I('s_load_dwordx2 s[14:15], s[0:1], %d' % KA_W1)
    I('s_load_dwordx2 s[16:17], s[0:1], %d' % KA_W2)
    I('v_and_b32 v1, 63, v0')
    I('v_lshrrev_b32 v2, 6, v0')
    I('v_readfirstlane_b32 s3, v2')
    I('v_and_b32 v3, 15, v1')
    I('v_lshrrev_b32 v4, 4, v1')
    I('v_lshlrev_b32 v5, 4, v1')
    I('v_lshrrev_b32 v6, 2, v3')
    I('v_lshlrev_b32 v6, 3, v6')
    I('v_and_b32 v7, 3, v3')
    I('v_add_u32 v6, v6, v7')
    I('s_waitcnt lgkmcnt(0)')
    lA, lB, lC, lE, lF, lEnd = [k.newlabel(x) for x in ('A', 'B', 'C', 'E', 'F', 'End')]
    I('s_cmp_ge_u32 s2, 240')
    k.branch('s_cbranch_scc1', lEnd)
    I('s_cmp_ge_u32 s2, 232')
    k.branch('s_cbranch_scc1', lF)
    I('s_cmp_ge_u32 s2, 200')
    k.branch('s_cbranch_scc1', lE)
    I('s_cmp_ge_u32 s2, 192')
    k.branch('s_cbranch_scc1', lC)
    I('s_cmp_ge_u32 s2, 120')
    k.branch('s_cbranch_scc1', lB)
    I('s_cmp_ge_u32 s2, 48')
    k.branch('s_cbranch_scc1', lA)

    k.C('role D')
    vm = VM(k)
    I('s_and_b32 s32, s2, 7')
    I('s_lshr_b32 s33, s2, 3')
    srd(k, 20, 8, 0, 576 * 3456)
    srd(k, 24, 4, OFF_WQKV, SZ_WQKV)
    srd(k, 28, 10, 0, 32 * 648)
    srd(k, 36, 4, OFF_CSQKV, SZ_CSQKV)
    I('s_mul_i32 s34, s32, %d' % (4 * 648))
    I('v_lshlrev_b32 v8, 1, v0')
    I('v_lshlrev_b32 v9, 2, v0')
    for i in range(6):
        I('buffer_load_ushort v%d, v8, s[28:31], s34 offen offset:%d' % (10 + i, i * 512))
    I('s_waitcnt vmcnt(0)')
    for i in range(6):
        I('v_lshlrev_b32 v%d, 16, v%d' % (10 + i, 10 + i))
        I('ds_write_b32 v9, v%d offset:%d' % (10 + i, i * 1024))
    I('s_waitcnt lgkmcnt(0)')
    I('s_barrier')
    SBASE = 6144
    I('v_and_b32 v8, 31, v0')
    I('v_lshrrev_b32 v9, 5, v0')
    I('v_and_b32 v10, 1, v9')
    I('v_lshrrev_b32 v11, 1, v9')
    I('v_mul_u32_u24 v12, 3456, v8')
    I('v_mul_u32_u24 v13, 1152, v10')
    I('v_add_u32 v12, v12, v13')
    I('v_mul_u32_u24 v13, 36, v11')
    I('v_add_u32 v12, v12, v13')
    I('v_mul_u32_u24 v14, 3456, v8')
    I('v_add_u32 v14, v14, v13')
    I('v_add_u32 v14, 2304, v14')
    I('v_mul_u32_u24 v15, 1296, v11')
    I('v_lshlrev_b32 v16, 8, v11')
    I('v_lshl_add_u32 v16, v8, 1, v16')
    I('v_add_u32 v16, %d, v16' % SBASE)
    I('v_cmp_eq_u32 vcc, 0, v10')
    I('s_mov_b64 s[40:41], vcc')
    I('s_not_b64 s[42:43], vcc')
    I('s_mul_i32 s35, s32, 144')
    I('s_mul_i32 s44, s33, %d' % (96 * 3456))
    I('s_add_u32 s35, s35, s44')
    W = 20
    WFv = 30
    ACC = 50
    PH = 70
    for i in range(3):
        I('s_add_u32 s45, s35, %d' % (i * 32 * 3456))
        for d2 in range(9):
            I('buffer_load_dword v%d, v12, s[20:23], s45 offen offset:%d' % (W + d2, d2 * 4))
        for d2 in range(9):
            I('buffer_load_dword v%d, v14, s[20:23], s45 offen offset:%d' % (90 + d2, d2 * 4))
        I('s_waitcnt vmcnt(9)')
        for d2 in range(9):
            unpack_pair(k, W + d2, WFv + 2 * d2, WFv + 2 * d2 + 1)
        for f in range(18):
            I('v_mov_b32 v%d, 0' % (ACC + f))
        for d in range(18):
            for f2 in range(9):
                I('ds_read_b64 v[%d:%d], v15 offset:%d' % (PH + 2 * f2, PH + 2 * f2 + 1, (d * 18 + 2 * f2) * 4))
            for f2 in range(9):
                I('s_waitcnt lgkmcnt(%d)' % (8 - f2))
                I('v_fmac_f32 v%d, v%d, v%d' % (ACC + 2 * f2, WFv + d, PH + 2 * f2))
                I('v_fmac_f32 v%d, v%d, v%d' % (ACC + 2 * f2 + 1, WFv + d, PH + 2 * f2 + 1))
        for f2 in range(9):
            I('v_cvt_pk_bf16_f32 v%d, v%d, v%d' % (W + f2, ACC + 2 * f2, ACC + 2 * f2 + 1))

        def soff(s):
            return i * 14336 + ((s >> 2) * 16 + (s & 3)) * 64
        for which in range(2):
            I('s_mov_b64 exec, s[%d:%d]' % (40 + 2 * which, 41 + 2 * which))
            for f in range(18):
                s = which * 18 + f
                mn = 'ds_write_b16' if f % 2 == 0 else 'ds_write_b16_d16_hi'
                I('%s v16, v%d offset:%d' % (mn, W + f // 2, soff(s)))
            if which == 0:
                I('s_waitcnt vmcnt(0)')
                for dd in range(18):
                    s = 36 + dd
                    mn = 'ds_write_b16' if dd % 2 == 0 else 'ds_write_b16_d16_hi'
                    I('%s v16, v%d offset:%d' % (mn, 90 + dd // 2, soff(s)))
            else:
                I('v_mov_b32 v%d, 0' % PH)
                for s in (54, 55):
                    I('ds_write_b16 v16, v%d offset:%d' % (PH, soff(s)))
        I('s_mov_b64 exec, -1')
    I('s_waitcnt lgkmcnt(0)')
    I('s_barrier')
    I('v_lshlrev_b32 v8, 6, v3')
    I('v_lshl_add_u32 v8, v4, 4, v8')
    I('s_lshl_b32 s46, s3, 10')
    I('v_add_u32 v8, s46, v8')
    I('v_add_u32 v8, %d, v8' % SBASE)
    I('s_mul_i32 s47, s32, 18')
    I('s_mul_i32 s48, s33, 3')
    I('s_add_u32 s47, s47, s48')
    I('s_mul_i32 s47, s47, %d' % (14 * 1024))
    I('s_add_u32 s47, s47, s46')
    I('s_lshl_b32 s49, s33, 3')
    I('s_add_u32 s49, s49, s32')
    I('s_mul_i32 s49, s49, %d' % (14 * 64))
    I('s_lshl_b32 s50, s3, 6')
    I('s_add_u32 s49, s49, s50')
    I('v_lshlrev_b32 v9, 2, v3')
    I('v_mov_b32 v10, 0x%x' % OOB)
    I('v_cmp_gt_u32 vcc, 16, v1')
    I('v_cndmask_b32 v9, v10, v9, vcc')
    lskip = k.newlabel('Dskip')
    for tq in range(4):
        if tq == 3:
            I('s_cmp_ge_u32 s3, 2')
            k.branch('s_cbranch_scc1', lskip)
        for i in range(3):
            I('ds_read_b128 v[%d:%d], v8 offset:%d' % (20 + 4 * i, 23 + 4 * i, i * 14336 + tq * 4096))
        I('v_mov_b32 v40, 0')
        for i in range(3):
            I('s_waitcnt lgkmcnt(%d)' % (2 - i))
            I('s_add_u32 s51, s47, %d' % (i * 14 * 1024 + tq * 4096))
            I('buffer_store_dwordx4 v[%d:%d], v5, s[24:27], s51 offen' % (20 + 4 * i, 23 + 4 * i))
            for r in range(4):
                unpack_pair(k, 20 + 4 * i + r, 41, 42)
                I('v_add_f32 v40, v40, v41')
                I('v_add_f32 v40, v40, v42')
        xor_add(k, 40, 41)
        I('s_add_u32 s51, s49, %d' % (tq * 256))
        I('buffer_store_dword v40, v9, s[36:39], s51 offen')
    k.label(lskip)
    k.branch('s_branch', lEnd)

    k.label(lA)
    k.C('role A')
    vm = VM(k)
    I('s_sub_u32 s32, s2, 48')
    I('s_lshl_b32 s32, s32, 2')
    I('s_add_u32 s32, s32, s3')
    I('s_mul_i32 s33, s32, 7282')
    I('s_lshr_b32 s33, s33, 16')
    I('s_mul_i32 s34, s33, 9')
    I('s_sub_u32 s34, s32, s34')
    srd(k, 20, 14, 0, 576 * 9216)
    srd(k, 24, 4, OFF_W1, SZ_W1)
    srd(k, 28, 4, OFF_CS1, SZ_CS1)
    I('s_lshr_b32 s35, s34, 1')
    I('s_lshl_b32 s35, s35, 5')
    I('s_and_b32 s36, s34, 1')
    I('s_lshl_b32 s36, s36, 2')
    I('s_add_u32 s35, s35, s36')
    I('s_cmp_lt_u32 s34, 8')
    I('s_cselect_b32 s36, -1, 0')
    I('v_bfi_b32 v8, s36, v6, v3')
    I('s_mul_i32 s37, s33, 144')
    I('s_add_u32 s35, s35, s37')
    I('v_add_u32 v8, s35, v8')
    I('v_lshlrev_b32 v9, 2, v8')
    I('v_mov_b32 v10, 0x%x' % OOB)
    I('v_cmp_gt_u32 vcc, 16, v1')
    I('v_cndmask_b32 v9, v10, v9, vcc')
    I('v_lshlrev_b32 v8, 1, v8')
    I('v_mul_u32_u24 v10, %d, v4' % (8 * 9216))
    I('v_add_u32 v8, v8, v10')
    I('s_mul_i32 s38, s33, %d' % (162))
    I('s_add_u32 s38, s38, s34')
    I('s_lshl_b32 s38, s38, 10')
    I('v_mov_b32 v40, 0')
    frags = []
    for ks in range(18):
        frags.append(dict(srd=20, loads=[(8, (None, (ks * 32 + j) * 9216)) for j in range(8)]))

    def doneA(i, reg):
        I('s_add_u32 s61, s38, %d' % (i * 9 * 1024))
        I('buffer_store_dwordx4 v[%d:%d], v5, s[24:27], s61 offen' % (reg, reg + 3))
        vm.issue('st')
        for r in range(4):
            unpack_pair(k, reg + r, 41, 42)
            I('v_add_f32 v40, v40, v41')
            I('v_add_f32 v40, v40, v42')
    gather_frag_pipeline(k, vm, frags, 5, 44, doneA)
    xor_add(k, 40, 41)
    I('buffer_store_dword v40, v9, s[28:31], 0 offen')
    k.branch('s_branch', lEnd)

    k.label(lB)
    k.C('role B')
    vm = VM(k)
    I('s_sub_u32 s32, s2, 120')
    I('s_lshl_b32 s32, s32, 2')
    I('s_add_u32 s32, s32, s3')
    I('s_mul_i32 s33, s32, 1821')
    I('s_lshr_b32 s33, s33, 16')
    I('s_mul_i32 s34, s33, 36')
    I('s_sub_u32 s34, s32, s34')
    srd(k, 20, 16, 0, 4608 * 1152)
    srd(k, 24, 4, OFF_W2, SZ_W2)
    I('s_mul_i32 s35, s33, 144')
    I('v_mul_u32_u24 v10, %d, v4' % (8 * 1152))
    I('v_lshl_add_u32 v8, v6, 1, v10')
    I('v_add_u32 v8, s35, v8')
    I('v_lshl_add_u32 v9, v3, 1, v10')
    I('v_add_u32 v9, s35, v9')
    I('v_mov_b32 v11, 0x%x' % OOB)
    I('v_cmp_gt_u32 vcc, 8, v3')
    I('v_cndmask_b32 v9, v11, v9, vcc')
    I('s_mul_i32 s36, s34, %d' % (128 * 1152))
    I('s_mul_i32 s38, s33, 144')
    I('s_lshl_b32 s37, s34, 2')
    I('s_add_u32 s38, s38, s37')
    I('s_mul_i32 s38, s38, 5120')
    frags = []
    for ks in range(4):
        for tile in range(5):
            cc = (32 * (tile >> 1) + 4 * (tile & 1)) * 2 if tile < 4 else 128
            frags.append(dict(srd=20, loads=[((8 if tile < 4 else 9), (36, (ks * 32 + j) * 1152 + cc)) for j in range(8)]))

    def doneB(i, reg):
        I('s_add_u32 s61, s38, %d' % (i * 1024))
        I('buffer_store_dwordx4 v[%d:%d], v5, s[24:27], s61 offen' % (reg, reg + 3))
        vm.issue('st')
    gather_frag_pipeline(k, vm, frags, 5, 44, doneB)
    k.branch('s_branch', lEnd)

    k.label(lC)
    k.C('role C')
    vm = VM(k)
    I('s_sub_u32 s32, s2, 192')
    I('s_lshl_b32 s32, s32, 2')
    I('s_add_u32 s32, s32, s3')
    I('s_lshr_b32 s33, s32, 3')
    I('s_and_b32 s34, s32, 7')
    srd(k, 20, 12, 0, 576 * 1152)
    srd(k, 24, 4, OFF_WO, SZ_WO)
    I('v_mul_u32_u24 v10, %d, v4' % (4 * 1152))
    I('v_lshl_add_u32 v8, v6, 1, v10')
    I('v_lshl_add_u32 v9, v3, 1, v10')
    I('v_lshlrev_b32 v11, 1, v6')
    I('v_lshlrev_b32 v12, 1, v3')
    I('v_mov_b32 v13, 0x%x' % OOB)
    I('v_cmp_eq_u32 vcc, 0, v4')
    I('v_cndmask_b32 v11, v13, v11, vcc')
    I('v_cndmask_b32 v12, v13, v12, vcc')
    I('s_mul_i32 s36, s34, %d' % (72 * 1152))
    I('s_mul_i32 s37, s33, 288')
    I('s_add_u32 s36, s36, s37')
    I('s_mul_i32 s38, s32, %d' % (27 * 1024))
    frags = []
    for ks in range(3):
        for tile in range(9):
            cc = (32 * (tile >> 1) + 4 * (tile & 1)) * 2 if tile < 8 else 256
            loads = []
            for j in range(8):
                q = ks * 8 + j
                hl, sub = q // 6, q % 6
                if sub < 4:
                    vo = 8 if tile < 8 else 9
                    row = hl * 18 + sub
                else:
                    vo = 11 if tile < 8 else 12
                    row = hl * 18 + 12 + sub
                loads.append((vo, (36, row * 1152 + cc)))
            frags.append(dict(srd=20, loads=loads))

    def doneC(i, reg):
        I('s_add_u32 s61, s38, %d' % (i * 1024))
        I('buffer_store_dwordx4 v[%d:%d], v5, s[24:27], s61 offen' % (reg, reg + 3))
        vm.issue('st')
    gather_frag_pipeline(k, vm, frags, 5, 44, doneC)
    k.branch('s_branch', lEnd)

    k.label(lE)
    k.C('role E')
    I('s_sub_u32 s32, s2, 200')
    I('s_lshl_b32 s32, s32, 2')
    I('s_add_u32 s32, s32, s3')
    srd(k, 20, 6, 0, 2048 * 1152)
    srd(k, 24, 4, OFF_X, SZ_X)
    srd(k, 28, 4, OFF_STATS, SZ_STATS)
    I('v_mul_u32_u24 v8, 1152, v3')
    I('v_lshl_add_u32 v8, v4, 4, v8')
    I('s_mul_i32 s33, s32, %d' % (16 * 1152))
    I('s_mul_i32 s34, s32, %d' % (18 * 1024))
    XR = 16
    for ks in range(18):
        I('buffer_load_dwordx4 v[%d:%d], v8, s[20:23], s33 offen offset:%d' % (XR + 4 * ks, XR + 4 * ks + 3, ks * 64))
    I('v_mov_b32 v9, 0')
    for ks in range(18):
        I('s_waitcnt vmcnt(%d)' % (17))
        I('s_add_u32 s35, s34, %d' % (ks * 1024))
        I('buffer_store_dwordx4 v[%d:%d], v5, s[24:27], s35 offen' % (XR + 4 * ks, XR + 4 * ks + 3))
        for r in range(4):
            unpack_pair(k, XR + 4 * ks + r, 10, 11)
            I('v_add_f32 v9, v9, v10')
            I('v_add_f32 v9, v9, v11')
    xor_add(k, 9, 10)
    I('v_mul_f32 v9, 0x%x, v9' % fbits(1.0 / 576.0))
    I('v_mov_b32 v12, 0')
    for ks in range(18):
        for r in range(4):
            unpack_pair(k, XR + 4 * ks + r, 10, 11)
            I('v_sub_f32 v10, v10, v9')
            I('v_sub_f32 v11, v11, v9')
            I('v_fmac_f32 v12, v10, v10')
            I('v_fmac_f32 v12, v11, v11')
    xor_add(k, 12, 10)
    I('v_mov_b32 v10, v9')
    I('v_mov_b32 v11, v12')
    I('v_lshlrev_b32 v13, 7, v3')
    I('v_mov_b32 v14, 0x%x' % OOB)
    I('v_cmp_gt_u32 vcc, 16, v1')
    I('v_cndmask_b32 v13, v14, v13, vcc')
    I('s_lshl_b32 s36, s32, 11')
    I('buffer_store_dwordx2 v[10:11], v13, s[28:31], s36 offen')
    k.branch('s_branch', lEnd)

    k.label(lF)
    k.C('role F')
    I('s_sub_u32 s32, s2, 232')
    I('s_lshl_b32 s32, s32, 2')
    I('s_add_u32 s32, s32, s3')
    srd(k, 24, 4, OFF_KV, 2 * STRIDE_KV)
    I('s_lshl_b32 s33, s32, 14')
    for r in range(4):
        I('v_mov_b32 v%d, 0' % (8 + r))
    for i in range(16):
        I('s_add_u32 s34, s33, %d' % (i * 1024))
        I('buffer_store_dwordx4 v[8:11], v5, s[24:27], s34 offen')
    k.label(lEnd)
    I('s_endpgm')
    return k, 240, 256, 6144 + 3 * 14336
```

```python
import sys, os
sys.path.insert(0, os.path.dirname(os.path.abspath(__file__)))
from prep import gen_prep
from k1 import gen_k1
from k2 import gen_k2
from k3 import gen_k3
from k4 import gen_k4

NAME = 'interleave_layers__linear_kernel_hedgehog__dense_activation_squared_relu__prompt'
HEADER = open('cdna_kernels/%s.s.ref' % NAME).read().split('; Override launch')[0]


def main(out):
    ks = [gen_prep()]
    for layer in range(2):
        ks += [gen_k1(layer), gen_k2(layer), gen_k3(layer), gen_k4(layer)]
    s = HEADER
    for k, grid, block, lds in ks:
        s += '; @launch kernel=%s grid=(%d,1,1) block=(%d,1,1) lds=%d\n' % (k.name, grid, block, lds)
    s += '.amdgcn_target "amdgcn-amd-amdhsa--gfx950"\n.text\n'
    for k, grid, block, lds in ks:
        s += '.globl %s\n.p2align 8\n.type %s,@function\n%s:\n' % (k.name, k.name, k.name)
        s += k.text() + '\n'
    s += '.section .rodata,"a"\n'
    for k, grid, block, lds in ks:
        s += '.p2align 6\n' + k.descriptor()
    open(out, 'w').write(s)
    for k, grid, block, lds in ks:
        print('%-16s insts=%6d vgpr=%3d sgpr=%3d lds=%d' % (k.name, k.ninst, k.max_v + 1, k.max_s + 1, lds))


if __name__ == '__main__':
    main(sys.argv[1] if len(sys.argv) > 1 else 'cdna_kernels/%s.s' % NAME)
```
